```python
import torch

def _softmax(x, axis=-1):
    return torch.softmax(x, dim=axis)
def _gelu(x):
    return torch.nn.functional.gelu(x, approximate="tanh")
def _silu(x):
    return torch.nn.functional.silu(x)
def _sigmoid(x):
    return torch.sigmoid(x)
def _layernorm(x, axis=-1, eps=1e-5):
    m = x.mean(dim=axis, keepdim=True)
    v = x.var(dim=axis, keepdim=True, unbiased=False)
    return (x - m) / torch.sqrt(v + eps)
def _scatter_add(tgt, idx, src, axis=0):
    return tgt.clone().index_add_(axis, idx, src)
def _segment_sum(src, seg, n):
    out = torch.zeros((n,) + src.shape[1:], dtype=src.dtype)
    return out.index_add_(0, seg, src)
def _pad(x, pw):
    flat = tuple(v for pair in reversed(pw) for v in pair)
    return torch.nn.functional.pad(x, flat)

kernel_name = 'parallel_sum__mha_block__glu_gated_bilinear__prompt'

def setup_inputs():

    _w = (lambda a: (lambda t: t.to(torch.bfloat16) if t.is_floating_point() else t)(torch.as_tensor(a)))
    def _A_setup():
        B, S, D, H = 1, 2048, 640, 32
        return {
            "x": _w((lambda *s: torch.randn(*s, dtype=torch.bfloat16) * 0.05)(B, S, D)),
            "wqkv": _w((lambda *s: torch.randn(*s, dtype=torch.bfloat16) * 0.05)(D, 3 * D)),
            "wo": _w((lambda *s: torch.randn(*s, dtype=torch.bfloat16) * 0.05)(D, D)),
        }
    _A_in = _A_setup()

    def _B_setup():
        B, S, D, F = 1, 2048, 640, 1536
        return {
            "x": _w((lambda *s: torch.randn(*s, dtype=torch.bfloat16) * 0.05)(B, S, D)),
            "w_gate": _w((lambda *s: torch.randn(*s, dtype=torch.bfloat16) * 0.8)(D, F) * (D ** -0.5)),
            "w_up": _w((lambda *s: torch.randn(*s, dtype=torch.bfloat16) * 0.8)(D, F) * (D ** -0.5)),
            "w_down": _w((lambda *s: torch.randn(*s, dtype=torch.bfloat16) * 0.8)(F, D) * (F ** -0.5)),
        }
    _B_in = _B_setup()

    return {
        "A_x": _A_in["x"],
        "A_wqkv": _A_in["wqkv"],
        "A_wo": _A_in["wo"],
        "B_x": _B_in["x"],
        "B_w_gate": _B_in["w_gate"],
        "B_w_up": _B_in["w_up"],
        "B_w_down": _B_in["w_down"],
    }

def reference(A_x, A_wqkv, A_wo, B_x, B_w_gate, B_w_up, B_w_down):
    def _A_ref(x, wqkv, wo):
        B, S, D = x.shape
        H = 32
        Dh = D // H
        qkv = (lambda x, *d: x.permute(*d))((x @ wqkv).reshape(B, S, 3, H, Dh), 2, 0, 3, 1, 4)
        q, k, v = qkv[0], qkv[1], qkv[2]
        scores = torch.einsum("bhqd,bhkd->bhqk", q, k) * (Dh ** -0.5)
        p = _softmax(scores, axis=-1)
        o = torch.einsum("bhqk,bhkd->bhqd", p, v)
        return (lambda x, *d: x.permute(*d))(o, 0, 2, 1, 3).reshape(B, S, D) @ wo

    def _B_ref(x, w_gate, w_up, w_down):
        g = torch.einsum("bsd,df->bsf", x, w_gate)
        u = torch.einsum("bsd,df->bsf", x, w_up)
        h = g * u
        return torch.einsum("bsf,fd->bsd", h, w_down)

    x = A_x
    xn = _layernorm(x, axis=-1)
    return x + _A_ref(xn, A_wqkv, A_wo) + _B_ref(xn, B_w_gate, B_w_up, B_w_down)
```

```python
import re

TRANS = ("v_exp_f32", "v_log_f32", "v_rcp_f32", "v_rsq_f32", "v_sqrt_f32", "v_sin_f32", "v_cos_f32",
         "v_exp_f16", "v_rcp_iflag_f32")


def _expand(tok):
    tok = tok.strip()
    tok = tok.lstrip("-")
    m = re.fullmatch(r"abs\((.*)\)", tok)
    if m:
        tok = m.group(1)
    m = re.fullmatch(r"\|(.*)\|", tok)
    if m:
        tok = m.group(1)
    m = re.fullmatch(r"([vsa])(\d+)", tok)
    if m:
        return [(m.group(1), int(m.group(2)))]
    m = re.fullmatch(r"([vsa])\[(\d+):(\d+)\]", tok)
    if m:
        return [(m.group(1), i) for i in range(int(m.group(2)), int(m.group(3)) + 1)]
    if tok == "vcc":
        return [("s", 106), ("s", 107)]
    if tok == "vcc_lo":
        return [("s", 106)]
    if tok == "vcc_hi":
        return [("s", 107)]
    if tok == "exec":
        return [("s", 126), ("s", 127)]
    if tok == "exec_lo":
        return [("s", 126)]
    if tok == "exec_hi":
        return [("s", 127)]
    if tok == "m0":
        return [("s", 124)]
    return []


class Ins:
    __slots__ = ("text", "op", "dst", "src", "kind", "srcC", "passes", "mods", "label", "nops", "srcAB", "data")

    def __init__(self, text):
        self.text = text
        self.label = None
        self.dst, self.src, self.srcC, self.srcAB, self.data = [], [], [], [], []
        self.passes = 0
        self.nops = 1
        t = text.split(";")[0].strip()
        if t.endswith(":"):
            self.kind = "label"
            self.label = t[:-1]
            self.op = ""
            self.nops = 0
            return
        if t.startswith("."):
            self.kind = "dir"
            self.op = t.split()[0]
            self.nops = 0
            return
        parts = t.split(None, 1)
        op = parts[0]
        self.op = op
        rest = parts[1] if len(parts) > 1 else ""
        ops = [o.strip() for o in rest.split(",")] if rest else []
        self.mods = ""
        if ops:
            last = ops[-1].split(None, 1)
        ops, depth, cur = [], 0, ""
        for ch in rest:
            if ch in "[(":
                depth += 1
            if ch in "])":
                depth -= 1
            if ch == "," and depth == 0:
                ops.append(cur.strip())
                cur = ""
            else:
                cur += ch
        if cur.strip():
            ops.append(cur.strip())
        if ops:
            last = ops[-1].split(None, 1)
            ops[-1] = last[0]
            self.mods = last[1] if len(last) > 1 else ""
        R = [_expand(o) for o in ops]
        flat = lambda l: [x for y in l for x in y]
        if op.startswith("v_mfma"):
            self.kind = "mfma"
            self.dst = R[0]
            self.srcAB = R[1] + R[2]
            self.srcC = R[3]
            self.src = self.srcAB + self.srcC
            self.passes = 8 if "32x32x16" in op else 4 if "16x16x32" in op else None
            assert self.passes
        elif op.startswith("v_"):
            self.kind = "valu"
            base = op.replace("_e32", "").replace("_e64", "").replace("_dpp", "").replace("_sdwa", "")
            if base.startswith("v_cmp"):
                self.dst = R[0]
                self.src = flat(R[1:])
            elif base in ("v_add_co_u32", "v_sub_co_u32", "v_addc_co_u32", "v_subb_co_u32", "v_subrev_co_u32"):
                self.dst = R[0] + R[1]
                self.src = flat(R[2:])
            elif base.startswith("v_permlane"):
                self.dst = R[0] + R[1]
                self.src = R[0] + R[1]
            elif base in ("v_fmac_f32", "v_dot2c_f32_bf16", "v_writelane_b32"):
                self.dst = R[0]
                self.src = flat(R)
            elif base == "v_nop":
                pass
            else:
                self.dst = R[0]
                self.src = flat(R[1:])
                if "_dpp" in op:
                    self.src += R[0]
        elif op.startswith("ds_read") or op.startswith("ds_bpermute") or op.startswith("ds_swizzle"):
            self.kind = "lds"
            self.dst = R[0]
            self.src = flat(R[1:])
        elif op.startswith("ds_"):
            self.kind = "lds"
            self.src = flat(R)
            self.data = flat(R[1:])
        elif op.startswith("buffer_load") or op.startswith("global_load"):
            self.kind = "vmem"
            if " lds" in (" " + self.mods) or "load_lds" in op:
                self.src = flat(R) + [("s", 124)]
            else:
                self.dst = R[0]
                self.src = flat(R[1:])
        elif op.startswith("buffer_store"):
            self.kind = "vmem"
            self.src = flat(R)
            self.data = R[0]
        elif op.startswith("global_store"):
            self.kind = "vmem"
            self.src = flat(R)
            self.data = R[1]
        elif op.startswith("buffer_atomic") or op.startswith("global_atomic"):
            self.kind = "vmem"
            self.src = flat(R)
            if "sc0" in self.mods:
                self.dst = R[0]
        elif op.startswith("buffer_") :
            self.kind = "vmem"
        elif op.startswith("s_load") or op.startswith("s_buffer_load") or op in ("s_memtime", "s_memrealtime"):
            self.kind = "smem"
            self.dst = R[0]
            self.src = flat(R[1:])
        elif op == "s_nop":
            self.kind = "nop"
            self.nops = int(ops[0], 0) + 1
        elif op == "s_waitcnt":
            self.kind = "wait"
            self.mods = rest
        elif op in ("s_barrier", "s_endpgm", "s_setprio", "s_sleep") or op.startswith("s_branch") or op.startswith("s_cbranch"):
            self.kind = "ctl"
            if op.startswith("s_cbranch_vcc"):
                self.src = _expand("vcc")
            if op.startswith("s_cbranch_exec"):
                self.src = _expand("exec")
            self.mods = rest
        elif op.startswith("s_cmp") or op.startswith("s_bitcmp"):
            self.kind = "salu"
            self.src = flat(R)
        elif op.startswith("s_"):
            self.kind = "salu"
            self.dst = R[0]
            self.src = flat(R[1:])
            if "saveexec" in op:
                self.dst = self.dst + _expand("exec")
                self.src += _expand("exec")
            if op in ("s_addk_i32", "s_mulk_i32"):
                self.src += R[0]
        else:
            raise ValueError("unparsed: " + text)


def _inter(a, b):
    return bool(set(a) & set(b))


def required_gap(p, c):
    need = 0
    vd = [r for r in p.dst if r[0] in "va"]
    sd = [r for r in p.dst if r[0] == "s"]
    if p.kind == "valu":
        if c.kind == "mfma" and _inter(vd, c.src):
            need = max(need, 2)
        if c.kind == "valu":
            if any(p.op.startswith(t) for t in TRANS) and not any(c.op.startswith(t) for t in TRANS) and _inter(vd, c.src):
                need = max(need, 1)
            if (c.op.startswith("v_readlane") or c.op.startswith("v_readfirstlane")) and _inter(vd, c.src):
                need = max(need, 1)
            if ("_dpp" in c.op or c.op.startswith("v_permlane")) and _inter(vd, c.src):
                need = max(need, 2)
            if _inter(sd, c.src):
                need = max(need, 4 if (c.op.startswith("v_readlane") or c.op.startswith("v_writelane")) else 2)
        if any(p.op.startswith(t) for t in TRANS) and c.kind in ("vmem", "lds") and _inter(vd, c.src):
            need = max(need, 1)
        if c.kind in ("vmem",) and _inter(sd, c.src):
            need = max(need, 5)
        if c.kind in ("salu", "ctl", "smem") and _inter(sd, c.src):
            need = max(need, 2 if c.kind != "ctl" else 5)
    if p.kind == "salu":
        if ("s", 124) in p.dst and c.kind in ("vmem", "lds") and ("s", 124) in c.src:
            need = max(need, 1)
    if p.kind == "mfma":
        big = {4: 8, 8: 12}[p.passes]
        ovl = {4: 6, 8: 10}[p.passes]
        war = {4: 3, 8: 7}[p.passes]
        if c.kind == "mfma":
            if _inter(p.dst, c.srcAB):
                need = max(need, big)
            if _inter(p.dst, c.srcC):
                if not (p.dst == c.srcC and p.passes == c.passes):
                    need = max(need, ovl)
            elif _inter(p.dst, c.dst) and not (p.dst == c.dst):
                need = max(need, ovl)
            if p.dst == c.dst and not _inter(p.dst, c.srcC):
                need = max(need, ovl)
        elif c.kind in ("valu", "vmem", "lds"):
            if _inter(p.dst, c.src) or _inter(p.dst, c.dst):
                need = max(need, big)
            if c.kind == "valu" and _inter(p.srcC, c.dst):
                need = max(need, war)
    if p.kind == "vmem" and len(p.data) >= 3:
        if _inter(p.data, c.dst):
            need = max(need, 2 if c.kind in ("valu", "mfma") else 1)
    if p.kind == "lds" and len(p.data) >= 3:
        if _inter(p.data, c.dst):
            need = max(need, 2 if c.kind in ("valu", "mfma") else 1)
    return need


class Prog:
    def __init__(self, name):
        self.name = name
        self.ins = []
        self.maxv = 0
        self.maxs = 0

    def __call__(self, text):
        for line in text.split("\n"):
            line = line.strip()
            if not line or line.startswith(";"):
                continue
            self.add(Ins(line))
        return self

    def add(self, i, pad=True):
        if pad and i.kind not in ("label", "dir"):
            dist = 0
            need_pad = 0
            for p in reversed(self.ins):
                if dist >= 20:
                    break
                if p.kind in ("label", "dir"):
                    continue
                if p.kind == "ctl" and p.op in ("s_branch", "s_endpgm"):
                    break
                g = required_gap(p, i)
                if g > dist:
                    need_pad = max(need_pad, g - dist)
                dist += p.nops
            while need_pad > 0:
                n = min(need_pad, 16)
                self.ins.append(Ins(f"s_nop {n-1}"))
                need_pad -= n
        for r in i.dst + i.src:
            if r[0] == "v":
                self.maxv = max(self.maxv, r[1] + 1)
            if r[0] == "s" and r[1] < 102:
                self.maxs = max(self.maxs, r[1] + 1)
        self.ins.append(i)

    def label(self, l):
        self.add(Ins(l + ":"))

    def text(self):
        out = []
        for i in self.ins:
            if i.kind == "label":
                out.append(i.text)
            else:
                out.append("  " + i.text)
        return "\n".join(out) + "\n"

    def index_of(self, label):
        for k, i in enumerate(self.ins):
            if i.label == label:
                return k
        raise KeyError(label)

    def check_path(self, decisions, start=0, maxn=200000):
        errs = []
        pc = start
        dec = {k: list(v) for k, v in decisions.items()}
        hist = []
        vm = []
        lg = []
        n = 0
        while pc < len(self.ins) and n < maxn:
            i = self.ins[pc]
            n += 1
            if i.kind in ("label", "dir"):
                pc += 1
                continue
            dist = 0
            for p in reversed(hist[-24:]):
                g = required_gap(p, i)
                if g > dist:
                    errs.append(f"hazard: '{p.text}' -> '{i.text}' needs {g} has {dist}")
                dist += p.nops
                if dist >= 20:
                    break
            touched = set(i.src) | set(i.dst)
            for d, t in vm:
                if d & touched:
                    errs.append(f"vmcnt: '{i.text}' touches regs of outstanding '{t}'")
            for k, d, t in lg:
                if d & touched:
                    errs.append(f"lgkmcnt: '{i.text}' touches regs of outstanding '{t}'")
            if i.kind == "wait":
                m = re.search(r"vmcnt\((\d+)\)", i.mods)
                if m:
                    k = int(m.group(1))
                    if len(vm) > k:
                        vm = vm[len(vm) - k:] if k else []
                m = re.search(r"lgkmcnt\((\d+)\)", i.mods)
                if m:
                    k = int(m.group(1))
                    if any(x[0] == "smem" for x in lg) and k != 0:
                        pass
                    elif len(lg) > k:
                        lg = lg[len(lg) - k:] if k else []
            elif i.kind == "vmem":
                vm.append((set(i.dst), i.text))
                if len(vm) > 63:
                    errs.append(f"vmcnt overflow at '{i.text}'")
            elif i.kind == "lds":
                lg.append(("lds", set(i.dst), i.text))
            elif i.kind == "smem":
                lg.append(("smem", set(i.dst), i.text))
            hist.append(i)
            if i.op == "s_endpgm":
                break
            if i.op == "s_branch":
                pc = self.index_of(i.mods.strip())
                continue
            if i.op.startswith("s_cbranch"):
                tgt = i.mods.strip()
                q = dec.get(tgt, [])
                take = q.pop(0) if q else False
                if take:
                    pc = self.index_of(tgt)
                    continue
            pc += 1
        seen = []
        for e in errs:
            if e not in seen:
                seen.append(e)
        return seen


def v(i, n=1):
    return f"v{i}" if n == 1 else f"v[{i}:{i+n-1}]"


def s(i, n=1):
    return f"s{i}" if n == 1 else f"s[{i}:{i+n-1}]"


def kernel_text(p, nvgpr=None, nsgpr=None):
    nv = nvgpr or p.maxv
    nv = max(nv, 8)
    acc = (nv + 3) // 4 * 4
    ns = nsgpr or max(p.maxs, 16)
    body = f""".text
.globl {p.name}
.p2align 8
.type {p.name},@function
{p.name}:
{p.text()}"""
    desc = f""".section .rodata,"a"
.p2align 6
.amdhsa_kernel {p.name}
  .amdhsa_next_free_vgpr {nv}
  .amdhsa_next_free_sgpr {ns}
  .amdhsa_accum_offset {acc}
  .amdhsa_group_segment_fixed_size 0
  .amdhsa_kernarg_size 80
  .amdhsa_user_sgpr_count 2
  .amdhsa_user_sgpr_kernarg_segment_ptr 1
  .amdhsa_system_sgpr_workgroup_id_x 1
.end_amdhsa_kernel
"""
    return body + desc
```

```python
import sys, os, struct
sys.path.insert(0, os.path.dirname(__file__))
from asmlib import *

NAME = "parallel_sum__mha_block__glu_gated_bilinear__prompt"

XF_OFF, XF_SZ = 0x0, 64 * 40 * 1024
Q_OFF, Q_REC = 0x280000, 1280
Q_HS = 64 * Q_REC
Q_SZ = 32 * Q_HS
KV_OFF, KV_REC = 0x500000, 2560
KV_HS = 64 * KV_REC
KV_SZ = 32 * KV_HS
KN_OFF, KN_SZ = 0xA00000, 32 * 64 * 4
AF_OFF = 0xA10000
AF_RT = 272 * 256
AF_SZ = 128 * AF_RT
WS_USED = AF_OFF + AF_SZ

def f32(x):
    return "0x%08x" % struct.unpack("<I", struct.pack("<f", x))[0]

QSCALE = 1.4426950408889634 * (20 ** -0.5)


def srd(p, d, lo, hi, size, off=None):
    if off is None:
        p(f"s_mov_b32 s{d}, s{lo}")
        p(f"s_mov_b32 s{d+1}, s{hi}")
    else:
        p(f"s_add_u32 s{d}, s{lo}, {off}")
        p(f"s_addc_u32 s{d+1}, s{hi}, 0")
    p(f"s_mov_b32 s{d+2}, {size}")
    p(f"s_mov_b32 s{d+3}, 0x00020000")


def csel(p, d, a, b):
    p(f"s_mov_b32 s{d}, {b}")
    p(f"s_cselect_b32 s{d}, {a}, s{d}")


def k0():
    p = Prog("ln_kernel")
    p("s_cmp_ge_u32 s2, 256")
    p("s_cbranch_scc1 L0_end")
    p("s_load_dwordx2 s[4:5], s[0:1], 0")
    p("s_load_dwordx2 s[6:7], s[0:1], 72")
    p("v_lshrrev_b32 v1, 4, v0")
    p("s_lshl_b32 s3, s2, 3")
    p("v_add_u32 v1, s3, v1")
    p("v_and_b32 v2, 15, v0")
    p("s_movk_i32 s16, 1280")
    p("v_mul_lo_u32 v3, v1, s16")
    p("v_lshl_add_u32 v3, v2, 4, v3")
    p("s_waitcnt lgkmcnt(0)")
    srd(p, 8, 4, 5, 2048 * 1280)
    srd(p, 12, 6, 7, XF_SZ, off=XF_OFF)
    D = 4
    X = 24
    for j in range(5):
        p(f"buffer_load_dwordx4 {v(D+4*j,4)}, v3, s[8:11], 0 offen offset:{256*j}")
    p("v_lshrrev_b32 v64, 5, v1")
    p("v_mul_u32_u24 v64, 40, v64")
    p("v_lshrrev_b32 v65, 1, v2")
    p("v_add_u32 v64, v64, v65")
    p("v_lshlrev_b32 v64, 10, v64")
    p("v_and_b32 v65, 1, v2")
    p("v_lshl_add_u32 v64, v65, 9, v64")
    p("v_and_b32 v65, 31, v1")
    p("v_lshl_add_u32 v64, v65, 4, v64")
    for j in range(1, 5):
        p(f"s_mov_b32 s{16+j}, {8192*j}")
    p("s_mov_b32 s22, 0xffff0000")
    for j in range(5):
        p(f"s_waitcnt vmcnt({4-j})")
        for k in range(4):
            d = D + 4 * j + k
            x = X + 2 * (4 * j + k)
            p(f"v_lshlrev_b32 v{x}, 16, v{d}")
            p(f"v_and_b32 v{x+1}, s22, v{d}")
    p(f"v_add_f32 v66, v{X}, v{X+1}")
    p(f"v_add_f32 v67, v{X+2}, v{X+3}")
    for k in range(4, 40, 2):
        p(f"v_add_f32 v66, v66, v{X+k}")
        p(f"v_add_f32 v67, v67, v{X+k+1}")
    p("v_add_f32 v66, v66, v67")
    for r in (8, 4, 2, 1):
        p(f"v_add_f32_dpp v66, v66, v66 row_ror:{r} row_mask:0xf bank_mask:0xf")
    p(f"v_mul_f32 v66, {f32(1.0/640)}, v66")
    p(f"v_sub_f32 v68, v{X}, v66")
    p("v_mul_f32 v67, v68, v68")
    p(f"v_sub_f32 v69, v{X+1}, v66")
    p("v_mul_f32 v70, v69, v69")
    for k in range(2, 40, 2):
        p(f"v_sub_f32 v68, v{X+k}, v66")
        p(f"v_sub_f32 v69, v{X+k+1}, v66")
        p("v_fmac_f32 v67, v68, v68")
        p("v_fmac_f32 v70, v69, v69")
    p("v_add_f32 v67, v67, v70")
    for r in (8, 4, 2, 1):
        p(f"v_add_f32_dpp v67, v67, v67 row_ror:{r} row_mask:0xf bank_mask:0xf")
    p(f"v_mul_f32 v67, {f32(1.0/640)}, v67")
    p("v_cvt_pk_bf16_f32 v68, v66, v67")
    p("v_lshlrev_b32 v66, 16, v68")
    p("v_and_b32 v67, s22, v68")
    p(f"v_add_f32 v67, {f32(1e-5)}, v67")
    p("v_cvt_pk_bf16_f32 v67, v67, v67")
    p("v_and_b32 v67, s22, v67")
    p("v_sqrt_f32 v67, v67")
    p("v_cvt_pk_bf16_f32 v67, v67, v67")
    p("v_and_b32 v67, s22, v67")
    p("v_rcp_f32 v67, v67")
    for j in range(5):
        for k in range(4):
            d = D + 4 * j + k
            x = X + 2 * (4 * j + k)
            p(f"v_sub_f32 v{x}, v{x}, v66")
            p(f"v_sub_f32 v{x+1}, v{x+1}, v66")
            p(f"v_cvt_pk_bf16_f32 v{d}, v{x}, v{x+1}")
            p(f"v_lshlrev_b32 v{x}, 16, v{d}")
            p(f"v_and_b32 v{x+1}, s22, v{d}")
            p(f"v_mul_f32 v{x}, v{x}, v67")
            p(f"v_mul_f32 v{x+1}, v{x+1}, v67")
            p(f"v_cvt_pk_bf16_f32 v{d}, v{x}, v{x+1}")
        so = "0" if j == 0 else f"s{16+j}"
        p(f"buffer_store_dwordx4 {v(D+4*j,4)}, v64, s[12:15], {so} offen")
    p.label("L0_end")
    p("s_endpgm")
    errs = p.check_path({})
    return p, errs


R1OFF = 20480 + 128
SLOT = 2 * 20480 + 256


def k1_tables():
    T = {}
    def enc(sg):
        return ((sg // 20) << 7) | (sg % 20)
    qk, vv, ff = [], [], []
    for j in range(5):
        eq, ev, ef = [], [], []
        for a in range(4):
            for h in range(2):
                sig = 4 * j + a
                pp, idx = divmod(sig, 5)
                g = 10 * pp + ([0, 1, 4, 5, 6] if h == 0 else [2, 3, 9, 7, 8])[idx]
                eq.append(enc(g))
                ev.append(enc(8 * j + 2 * a + h))
                ef.append(((a >> 1) << 7) | (4 * j + 2 * h + (a & 1)))
        pk = lambda e: (sum(b << (8 * i) for i, b in enumerate(e[:4])), sum(b << (8 * i) for i, b in enumerate(e[4:])))
        qk.append(pk(eq)); vv.append(pk(ev)); ff.append(pk(ef))
    return qk, vv, ff


def k1():
    p = Prog("gemm1_kernel")
    LANE = 1
    VX16 = 2
    DOFF = 3
    TB = 8
    TC = 13
    T0 = 18
    XR = 32
    WF = 64
    ACC = 104
    sW, sSL, sRB, sRT = 3, 28, 29, 30
    sRS = 16
    sCS = 17
    sDS = 18
    sXS = 19
    sXS2 = 31
    sRD, sWR = 32, 33
    sDB = 34
    sCNT = 35
    sTAB = 40
    p("s_cmp_ge_u32 s2, 256")
    p("s_cbranch_scc1 L1_end")
    p("s_load_dwordx2 s[4:5], s[0:1], 8")
    p("s_load_dwordx4 s[8:11], s[0:1], 32")
    p("s_load_dwordx2 s[6:7], s[0:1], 72")
    p("v_lshrrev_b32 v18, 6, v0")
    p(f"v_and_b32 v{LANE}, 63, v0")
    p(f"v_readfirstlane_b32 s{sW}, v18")
    p(f"v_lshlrev_b32 v{VX16}, 4, v{LANE}")
    p("s_and_b32 s36, s2, 7")
    p("s_lshr_b32 s37, s2, 3")
    p("s_and_b32 s38, s36, 1")
    p("s_lshl_b32 s38, s38, 2")
    p("s_and_b32 s39, s37, 3")
    p(f"s_add_u32 s{sRB}, s38, s39")
    p("s_lshr_b32 s38, s36, 1")
    p("s_lshl_b32 s38, s38, 3")
    p("s_lshr_b32 s39, s37, 2")
    p(f"s_add_u32 s{sSL}, s38, s39")
    p(f"s_lshl_b32 s{sRT}, s{sRB}, 3")
    p(f"s_add_u32 s{sRT}, s{sRT}, s{sW}")
    p(f"s_lshr_b32 s36, s{sW}, 2")
    qk, vv, ff = k1_tables()
    p("s_waitcnt lgkmcnt(0)")
    p(f"s_cmp_ge_u32 s{sSL}, 12")
    p("s_cbranch_scc1 L1_setup_ffn")
    p(f"s_mul_i32 s37, s{sSL}, 320")
    p("s_mul_i32 s38, s36, 160")
    p("s_add_u32 s37, s37, s38")
    p("s_add_u32 s12, s4, s37")
    p("s_addc_u32 s13, s5, 0")
    p(f"s_sub_u32 s14, {640*3840}, s37")
    p(f"s_movk_i32 s{sRS}, 3840")
    p(f"s_cmp_ge_u32 s{sSL}, 8")
    p("s_cbranch_scc1 L1_setup_v")
    for j in range(5):
        p(f"s_mov_b32 s{sTAB+2*j}, 0x{qk[j][0]:08x}")
        p(f"s_mov_b32 s{sTAB+2*j+1}, 0x{qk[j][1]:08x}")
    p("s_branch L1_setup_done")
    p.label("L1_setup_v")
    for j in range(5):
        p(f"s_mov_b32 s{sTAB+2*j}, 0x{vv[j][0]:08x}")
        p(f"s_mov_b32 s{sTAB+2*j+1}, 0x{vv[j][1]:08x}")
    p("s_branch L1_setup_done")
    p.label("L1_setup_ffn")
    p(f"s_sub_u32 s37, s{sSL}, 12")
    p("s_mul_i32 s37, s37, 160")
    p("s_cmp_eq_u32 s36, 0")
    p("s_cselect_b32 s38, s8, s10")
    p("s_cselect_b32 s39, s9, s11")
    p("s_add_u32 s12, s38, s37")
    p("s_addc_u32 s13, s39, 0")
    p(f"s_sub_u32 s14, {640*3072}, s37")
    p(f"s_movk_i32 s{sRS}, 3072")
    for j in range(5):
        p(f"s_mov_b32 s{sTAB+2*j}, 0x{ff[j][0]:08x}")
        p(f"s_mov_b32 s{sTAB+2*j+1}, 0x{ff[j][1]:08x}")
    p.label("L1_setup_done")
    p("s_mov_b32 s15, 0x00020000")
    srd(p, 20, 6, 7, XF_SZ, off=XF_OFF)
    srd(p, 24, 6, 7, WS_USED)
    p(f"s_lshl_b32 s{sCS}, s{sRS}, 7")
    p(f"s_and_b32 s37, s{sW}, 3")
    p("s_lshl_b32 s38, s37, 5")
    for i in range(5):
        p(f"v_add_u32 v18, {64*i}, v{LANE}")
        p("v_mul_u32_u24 v19, 6554, v18")
        p("v_lshrrev_b32 v19, 16, v19")
        p("v_mul_u32_u24 v20, 10, v19")
        p("v_sub_u32 v20, v18, v20")
        p("v_add_u32 v19, s38, v19")
        p(f"v_mul_lo_u32 v19, v19, s{sRS}")
        p(f"v_lshl_add_u32 v{DOFF+i}, v20, 4, v19")
    p(f"s_mul_i32 s{sDB}, s36, {R1OFF}")
    p("s_mul_i32 s37, s37, 5120")
    p(f"s_add_u32 s{sDB}, s{sDB}, s37")
    p(f"s_mov_b32 s{sDS}, 0")
    for i in range(5):
        p(f"s_add_u32 m0, s{sDB}, {1024*i}")
        p(f"buffer_load_dwordx4 v{DOFF+i}, s[12:15], s{sDS} offen lds")
    p(f"s_mul_i32 s{sXS}, s{sRT}, 40960")
    p(f"s_add_u32 s{sXS2}, s{sXS}, 4096")
    p(f"s_mov_b32 s{sDS}, s{sCS}")
    p(f"s_add_u32 s37, s{sDB}, {SLOT}")
    for st in range(8):
        if st < 5:
            p(f"s_add_u32 m0, s37, {1024*st}")
            p(f"buffer_load_dwordx4 v{DOFF+st}, s[12:15], s{sDS} offen lds")
        so = sXS if st < 4 else sXS2
        p(f"buffer_load_dwordx4 {v(XR+4*st,4)}, v{VX16}, s[20:23], s{so} offen offset:{1024*(st%4)}")
    p(f"v_lshrrev_b32 v18, 4, v{LANE}")
    p(f"v_and_b32 v19, 3, v{LANE}")
    p(f"v_bfe_u32 v20, v{LANE}, 2, 2")
    p("v_lshrrev_b32 v21, 1, v18")
    p("v_lshl_add_u32 v20, v21, 3, v20")
    p("v_mul_u32_u24 v20, 160, v20")
    p("v_lshlrev_b32 v19, 3, v19")
    p("v_and_b32 v18, 1, v18")
    p("v_cmp_eq_u32 vcc, 1, v18")
    for j in range(5):
        p(f"v_mov_b32 v21, s{sTAB+2*j}")
        p(f"v_mov_b32 v22, s{sTAB+2*j+1}")
        p("v_cndmask_b32 v21, v21, v22, vcc")
        p("v_bfe_u32 v21, v21, v19, 8")
        p("v_lshrrev_b32 v22, 7, v21")
        p(f"v_mul_u32_u24 v22, {R1OFF}, v22")
        p("v_and_b32 v21, 127, v21")
        p("v_lshl_add_u32 v21, v21, 3, v22")
        p(f"v_add_u32 v{TB+j}, v21, v20")
    for r in range(80):
        p(f"v_mov_b32 v{ACC+r}, 0")
    p(f"s_add_u32 s{sDS}, s{sDS}, s{sCS}")
    p(f"s_mov_b32 s{sWR}, {2*SLOT}")
    p(f"s_mov_b32 s{sRD}, {SLOT}")
    p(f"s_add_u32 s{sXS}, s{sXS}, 8192")
    p(f"s_add_u32 s{sXS2}, s{sXS2}, 8192")
    p(f"s_mov_b32 s{sCNT}, 0")
    p("s_waitcnt vmcnt(13)")
    p("s_barrier")
    for j in range(5):
        p(f"ds_read_b64_tr_b16 {v(WF+4*j,2)}, v{TB+j}")
        p(f"ds_read_b64_tr_b16 {v(WF+4*j+2,2)}, v{TB+j} offset:640")
    for j in range(5):
        p(f"v_mov_b32 v{TC+j}, v{TB+j}")
    p(f"s_cmp_ge_u32 s{sSL}, 8")
    p("s_cbranch_scc0 L1_loopA")
    p(f"s_cmp_lt_u32 s{sSL}, 12")
    p("s_cbranch_scc1 L1_loopB")

    def loop(tag, swap):
        p.label(f"L1_loop{tag}")
        for st in range(8):
            cur = WF + 20 * (st % 2)
            nxt = WF + 20 * ((st + 1) % 2)
            xr = XR + 4 * st
            p(f"s_waitcnt vmcnt({11 if st < 5 else 12}) lgkmcnt(0)")
            if st == 7:
                p("s_barrier")
                for j in range(5):
                    p(f"v_add_u32 v{TC+j}, s{sRD}, v{TB+j}")
            if st < 5:
                p(f"s_add_u32 s37, s{sWR}, s{sDB}")
                p(f"s_add_u32 m0, s37, {1024*st}")
            off = 2560 * ((st + 1) % 8)
            for j in range(5):
                a = v(ACC + 16 * j, 16)
                if swap:
                    p(f"v_mfma_f32_32x32x16_bf16 {a}, {v(xr,4)}, {v(cur+4*j,4)}, {a}")
                else:
                    p(f"v_mfma_f32_32x32x16_bf16 {a}, {v(cur+4*j,4)}, {v(xr,4)}, {a}")
                p(f"ds_read_b64_tr_b16 {v(nxt+4*j,2)}, v{TC+j} offset:{off}")
                p(f"ds_read_b64_tr_b16 {v(nxt+4*j+2,2)}, v{TC+j} offset:{off+640}")
                if j == 0 and st < 5:
                    p(f"buffer_load_dwordx4 v{DOFF+st}, s[12:15], s{sDS} offen lds")
            so = sXS if st < 4 else sXS2
            p(f"buffer_load_dwordx4 {v(xr,4)}, v{VX16}, s[20:23], s{so} offen offset:{1024*(st%4)}")
        p(f"s_add_u32 s{sDS}, s{sDS}, s{sCS}")
        p(f"s_mov_b32 s{sWR}, s{sRD}")
        p(f"s_add_u32 s{sCNT}, s{sCNT}, 1")
        p(f"s_sub_u32 s{sWR}, s{sRD}, {SLOT}")
        p(f"s_cmp_eq_u32 s{sRD}, 0")
        p(f"s_cselect_b32 s{sWR}, {2*SLOT}, s{sWR}")
        p(f"s_add_u32 s36, s{sRD}, {SLOT}")
        p(f"s_cmp_eq_u32 s{sRD}, {2*SLOT}")
        p(f"s_cselect_b32 s{sRD}, 0, s36")
        p(f"s_add_u32 s{sXS}, s{sXS}, 8192")
        p(f"s_add_u32 s{sXS2}, s{sXS2}, 8192")
        p(f"s_cmp_ge_u32 s{sCNT}, 4")
        p(f"s_cselect_b32 s{sXS}, 0x40000000, s{sXS}")
        p(f"s_cselect_b32 s{sXS2}, 0x40000000, s{sXS2}")
        p(f"s_cmp_lt_u32 s{sCNT}, 5")
        p(f"s_cbranch_scc1 L1_loop{tag}")

    loop("A", False)
    p("s_waitcnt vmcnt(0) lgkmcnt(0)")
    p(f"s_cmp_ge_u32 s{sSL}, 12")
    p("s_cbranch_scc1 L1_epi_ffn")
    sBASE, sHS, sSC = 36, 37, 38
    p(f"s_cmp_ge_u32 s{sSL}, 4")
    csel(p, sHS, KV_HS, Q_HS)
    csel(p, 39, KV_REC, Q_REC)
    p(f"s_cselect_b32 s{sSC}, 1.0, {f32(QSCALE)}")
    csel(p, sBASE, KV_OFF, Q_OFF)
    p(f"s_and_b32 s40, s{sSL}, 3")
    p("s_lshl_b32 s40, s40, 3")
    p(f"s_mul_i32 s41, s40, s{sHS}")
    p(f"s_add_u32 s{sBASE}, s{sBASE}, s41")
    p(f"s_mul_i32 s41, s{sRT}, s39")
    p(f"s_add_u32 s{sBASE}, s{sBASE}, s41")
    p(f"v_lshrrev_b32 v18, 5, v{LANE}")
    p(f"v_mul_lo_u32 v19, v18, s{sHS}")
    p(f"v_and_b32 v20, 31, v{LANE}")
    p("v_lshl_add_u32 v19, v20, 3, v19")
    p("v_add_u32 v19, 1024, v19")
    slot = lambda sg: ACC + 4 * sg
    for r in range(80):
        p(f"v_mul_f32 v{ACC+r}, s{sSC}, v{ACC+r}")
    for pp in range(4):
        o = XR + 12 * (pp % 2)
        for k in range(4):
            p(f"v_cvt_pk_bf16_f32 v{o+k}, v{slot(5*pp)+2*k}, v{slot(5*pp)+2*k+1}")
        for k in range(4):
            p(f"v_cvt_pk_bf16_f32 v{o+4+k}, v{slot(5*pp+3)+2*k}, v{slot(5*pp+3)+2*k+1}")
        for k in range(2):
            p(f"v_cvt_pk_bf16_f32 v{o+8+k}, v{slot(5*pp+2)+2*k}, v{slot(5*pp+2)+2*k+1}")
        p(f"s_add_u32 s41, s{sBASE}, s{sHS}")
        p(f"buffer_store_dwordx4 {v(o,4)}, v{VX16}, s[24:27], s{sBASE} offen")
        p(f"buffer_store_dwordx4 {v(o+4,4)}, v{VX16}, s[24:27], s41 offen")
        p(f"buffer_store_dwordx2 {v(o+8,2)}, v19, s[24:27], s{sBASE} offen")
        p(f"s_add_u32 s{sBASE}, s41, s{sHS}")
    p(f"s_cmp_lt_u32 s{sSL}, 4")
    p("s_cbranch_scc1 L1_end")
    p("v_cmp_eq_u32 vcc, 0, v18")
    p(f"s_lshl_b32 s41, s40, 8")
    p(f"s_lshl_b32 s42, s{sRT}, 2")
    p("s_add_u32 s41, s41, s42")
    p(f"s_add_u32 s41, s41, {KN_OFF}")
    p("v_lshlrev_b32 v21, 8, v18")
    p(f"v_cmp_eq_u32 s[44:45], 0, v20")
    for pp in range(4):
        e0, o0, t0 = slot(5 * pp), slot(5 * pp + 3), slot(5 * pp + 2)
        p(f"v_mul_f32 v22, v{e0}, v{e0}")
        p(f"v_mul_f32 v23, v{o0}, v{o0}")
        p(f"v_mul_f32 v24, v{t0}, v{t0}")
        for k in range(1, 8):
            p(f"v_fmac_f32 v22, v{e0+k}, v{e0+k}")
            p(f"v_fmac_f32 v23, v{o0+k}, v{o0+k}")
        for k in range(1, 4):
            p(f"v_fmac_f32 v24, v{t0+k}, v{t0+k}")
        p("v_cndmask_b32 v25, 0, v24, vcc")
        p("v_cndmask_b32 v26, v24, 0, vcc")
        p("v_add_f32 v22, v22, v25")
        p("v_add_f32 v23, v23, v26")
        p("v_permlane32_swap_b32 v22, v23")
        p("v_add_f32 v22, v22, v23")
        for r in (8, 4, 2, 1):
            p(f"v_max_f32_dpp v22, v22, v22 row_ror:{r} row_mask:0xf bank_mask:0xf")
        p("v_mov_b32 v23, v22")
        p("v_permlane16_swap_b32 v22, v23")
        p("v_max_f32 v22, v22, v23")
        p("s_mov_b64 exec, s[44:45]")
        p(f"buffer_store_dword v22, v21, s[24:27], s41 offen offset:{512*pp}")
        p("s_mov_b64 exec, -1")
    p("s_branch L1_end")
    p.label("L1_epi_ffn")
    p(f"v_bfe_u32 v18, v{LANE}, 4, 1")
    p(f"v_mul_u32_u24 v18, {AF_RT}, v18")
    p(f"v_lshrrev_b32 v19, 5, v{LANE}")
    p("v_lshl_add_u32 v18, v19, 8, v18")
    p(f"v_and_b32 v19, 15, v{LANE}")
    p("v_lshl_add_u32 v18, v19, 4, v18")
    p(f"s_mul_i32 s36, s{sRT}, {2*AF_RT}")
    p(f"s_add_u32 s36, s36, {AF_OFF + 80*256}")
    p(f"s_sub_u32 s37, s{sSL}, 12")
    p("s_mul_i32 s37, s37, 2560")
    p("s_add_u32 s36, s36, s37")
    for j in range(5):
        a = ACC + 16 * j
        o = XR + 4 * j
        for r in range(8):
            p(f"v_mul_f32 v{a+r}, v{a+r}, v{a+r+8}")
        for k in range(4):
            p(f"v_cvt_pk_bf16_f32 v{o+k}, v{a+2*k}, v{a+2*k+1}")
        p(f"buffer_store_dwordx4 {v(o,4)}, v18, s[24:27], s36 offen offset:{512*j}")
        if j == 0:
            p(f"s_cmp_eq_u32 s{sSL}, 31")
            p("s_cbranch_scc1 L1_end")
    p("s_branch L1_end")
    loop("B", True)
    p("s_waitcnt vmcnt(0) lgkmcnt(0)")
    p(f"s_sub_u32 s36, s{sSL}, 8")
    p(f"s_mul_i32 s36, s36, {8*KV_HS}")
    p(f"s_mul_i32 s37, s{sRT}, {KV_REC}")
    p("s_add_u32 s36, s36, s37")
    p(f"s_add_u32 s36, s36, {KV_OFF + 1280}")
    p(f"s_mov_b32 s38, {KV_HS}")
    p("s_mov_b32 s39, 0x43120")
    p("s_mov_b32 s40, 0x31204")
    p(f"v_and_b32 v18, 31, v{LANE}")
    p(f"v_lshrrev_b32 v19, 5, v{LANE}")
    p("v_mul_u32_u24 v19, 320, v19")
    for j in range(5):
        a = ACC + 16 * j
        o = XR + 8 * (j % 2)
        p(f"v_add_u32 v20, {32*j}, v18")
        p("v_mul_u32_u24 v21, 3277, v20")
        p("v_lshrrev_b32 v21, 16, v21")
        p("v_mul_u32_u24 v22, 20, v21")
        p("v_sub_u32 v22, v20, v22")
        p("v_and_b32 v23, 1, v21")
        p("v_cmp_eq_u32 vcc, 1, v23")
        p("v_mov_b32 v23, s39")
        p("v_mov_b32 v24, s40")
        p("v_cndmask_b32 v23, v23, v24, vcc")
        p("v_and_b32 v24, 28, v22")
        p("v_bfe_u32 v23, v23, v24, 4")
        p("v_and_b32 v22, 3, v22")
        p("v_lshl_add_u32 v22, v23, 2, v22")
        p("v_mul_lo_u32 v21, v21, s38")
        p("v_lshl_add_u32 v21, v22, 4, v21")
        p(f"v_add_u32 v{26+(j%2)}, v21, v19")
        for k in range(8):
            p(f"v_cvt_pk_bf16_f32 v{o+k}, v{a+2*k}, v{a+2*k+1}")
        p(f"buffer_store_dwordx4 {v(o,4)}, v{26+(j%2)}, s[24:27], s36 offen")
        p(f"buffer_store_dwordx4 {v(o+4,4)}, v{26+(j%2)}, s[24:27], s36 offen offset:640")
    p.label("L1_end")
    p("s_endpgm")
    errs = []
    errs += p.check_path({"L1_loopA": [True, True, True, True, True, False]})
    errs += p.check_path({"L1_setup_v": [True], "L1_loopB": [True, True, True, True, True, False]})
    errs += p.check_path({"L1_setup_ffn": [True], "L1_loopA": [False, True, True, True, True, False], "L1_epi_ffn": [True]})
    return p, errs


def k2(UNR=4):
    p = Prog("attn_kernel")
    LANE, AKA, AKB, AV = 1, 2, 3, 4
    T = 5
    QA = [16, 24]
    KF = 32
    VF = 40
    P_ = [48, 56]
    S_ = [64, 80]
    O_ = [96, 112]
    sW, sHEAD, sQB = 3, 28, 29
    sVM = 30
    sHM = 32
    sCNT = 34
    p("s_cmp_ge_u32 s2, 256")
    p("s_cbranch_scc1 L2_end")
    p("s_load_dwordx2 s[6:7], s[0:1], 72")
    p("v_lshrrev_b32 v5, 6, v0")
    p(f"v_and_b32 v{LANE}, 63, v0")
    p(f"v_readfirstlane_b32 s{sW}, v5")
    p("s_and_b32 s36, s2, 7")
    p("s_lshl_b32 s36, s36, 2")
    p("s_bfe_u32 s37, s2, 0x20003")
    p(f"s_add_u32 s{sHEAD}, s36, s37")
    p(f"s_lshr_b32 s{sQB}, s2, 5")
    p(f"v_lshlrev_b32 v{AKA}, 4, v{LANE}")
    p(f"v_and_b32 v5, 31, v{LANE}")
    p(f"v_lshrrev_b32 v6, 5, v{LANE}")
    p("s_waitcnt lgkmcnt(0)")
    srd(p, 8, 6, 7, Q_SZ, off=Q_OFF)
    srd(p, 12, 6, 7, KV_SZ, off=KV_OFF)
    srd(p, 24, 6, 7, WS_USED)
    p(f"s_and_b32 s36, s{sW}, 3")
    p("s_lshl_b32 s37, s36, 1")
    p(f"s_lshl_b32 s38, s{sQB}, 3")
    p("s_add_u32 s37, s37, s38")
    p(f"s_lshl_b32 s38, s{sHEAD}, 6")
    p("s_add_u32 s38, s38, s37")
    p(f"s_mul_i32 s38, s38, {Q_REC}")
    p("v_lshlrev_b32 v7, 3, v5")
    p("v_add_u32 v7, 1024, v7")
    p(f"v_mov_b32 v{AKB}, v7")
    p("v_lshlrev_b32 v8, 30, v6")
    p("v_add_u32 v8, v8, v7")
    for t in range(2):
        p(f"buffer_load_dwordx4 {v(QA[t],4)}, v{AKA}, s[8:11], s38 offen offset:{Q_REC*t}")
        p(f"buffer_load_dwordx2 {v(QA[t]+4,2)}, v8, s[8:11], s38 offen offset:{Q_REC*t}")
    p(f"s_lshl_b32 s39, s{sHEAD}, 8")
    p(f"s_add_u32 s39, s39, {KN_OFF}")
    p(f"v_lshlrev_b32 v9, 2, v{LANE}")
    p("buffer_load_dword v10, v9, s[24:27], s39 offen")
    p(f"s_lshr_b32 s40, s{sW}, 2")
    p("s_mul_i32 s41, s40, 81920")
    p("s_lshl_b32 s42, s36, 10")
    p("s_add_u32 s42, s42, s41")
    p(f"s_mul_i32 s43, s{sHEAD}, {KV_HS}")
    p("s_add_u32 s43, s43, s42")
    for i in range(20):
        p("s_mov_b32 m0, s42")
        p(f"buffer_load_dwordx4 v{AKA}, s[12:15], s43 offen lds")
        if i < 19:
            p("s_add_u32 s42, s42, 4096")
            p("s_add_u32 s43, s43, 4096")
    p("v_mul_u32_u24 v7, 320, v6")
    p("v_lshl_add_u32 v7, v5, 4, v7")
    p(f"v_add_u32 v{AV}, 1280, v7")
    p(f"v_add_u32 v{AV}, s41, v{AV}")
    p(f"v_add_u32 v{AKB}, s41, v{AKB}")
    p(f"v_mov_b32 v15, v{AKA}")
    p(f"v_add_u32 v{AKA}, s41, v{AKA}")
    p(f"s_mov_b32 s{sVM}, 0x000fffff")
    p(f"s_mov_b32 s{sVM+1}, 0x000fffff")
    p(f"s_mov_b32 s{sHM}, 0")
    p(f"s_mov_b32 s{sHM+1}, -1")
    for r in range(8):
        p(f"v_mov_b32 v{VF+r}, 0x3f803f80")
    p(f"v_mov_b32 v{KF+6}, 0x00003f80")
    p(f"v_mov_b32 v{KF+7}, 0")
    for t in range(2):
        for r in range(16):
            p(f"v_mov_b32 v{O_[t]+r}, 0")
        for r in range(8):
            p(f"v_mov_b32 v{P_[t]+r}, 0")
    p("s_waitcnt vmcnt(20)")
    for r in (8, 4, 2, 1):
        p(f"v_max_f32_dpp v10, v10, v10 row_ror:{r} row_mask:0xf bank_mask:0xf")
    p("v_mov_b32 v11, v10")
    p("v_permlane16_swap_b32 v10, v11")
    p("v_max_f32 v10, v10, v11")
    p("v_mov_b32 v11, v10")
    p("v_permlane32_swap_b32 v10, v11")
    p("v_max_f32 v10, v10, v11")
    for t in range(2):
        q = QA[t]
        p(f"v_dot2_f32_bf16 v11, v{q}, v{q}, 0")
        for k in range(1, 6):
            p(f"v_dot2_f32_bf16 v11, v{q+k}, v{q+k}, v11")
        p("s_nop 2")
        p("v_mov_b32 v12, v11")
        p("v_permlane32_swap_b32 v11, v12")
        p("v_add_f32 v11, v11, v12")
        p("v_mul_f32 v11, v11, v10")
        p("v_sqrt_f32 v11, v11")
        p("v_sub_f32 v11, 0, v11")
        p("v_cvt_pk_bf16_f32 v11, v11, 0")
        p(f"v_cndmask_b32 v{q+6}, v11, 0, s[{sHM}:{sHM+1}]")
        p(f"v_mov_b32 v{q+7}, 0")
    p("s_waitcnt vmcnt(17)")
    p("s_barrier")
    p(f"ds_read_b128 {v(KF,4)}, v{AKA}")
    p(f"ds_read_b64 {v(KF+4,2)}, v{AKB}")
    p(f"s_mov_b32 s{sCNT}, 0")
    p("s_waitcnt lgkmcnt(0)")
    p(f"v_mfma_f32_32x32x16_bf16 {v(S_[0],16)}, {v(KF,4)}, {v(QA[0],4)}, 0")
    p(f"v_mfma_f32_32x32x16_bf16 {v(S_[0],16)}, {v(KF+4,4)}, {v(QA[0]+4,4)}, {v(S_[0],16)}")
    p("s_nop 7")
    p("s_nop 3")

    def block(x, tile_off):
        y = 1 - x
        S, P = S_[x], P_[x]
        val = []
        for k in range(8):
            val.append(f"v_exp_f32 v{S+2*k}, v{S+2*k}")
            val.append(f"v_exp_f32 v{S+2*k+1}, v{S+2*k+1}")
        seq = []
        seq += val[0:4]
        for k in range(8):
            seq.append(f"v_cvt_pk_bf16_f32 v{P+k}, v{S+2*k}, v{S+2*k+1}")
            if 4 + 2 * k < 16:
                seq += val[4 + 2 * k: 6 + 2 * k]
        assert len(seq) == 24
        ins = {}
        ins[0] = []
        if x == 1:
            ins[0].append("s_waitcnt lgkmcnt(2)")
        ins[0].append(f"v_mfma_f32_32x32x16_bf16 {v(S_[y],16)}, {v(KF,4)}, {v(QA[y],4)}, 0")
        ins[5] = [f"v_mfma_f32_32x32x16_bf16 {v(S_[y],16)}, {v(KF+4,4)}, {v(QA[y]+4,4)}, {v(S_[y],16)}"]
        if x == 0:
            ins[5] += [f"ds_read_b128 {v(KF,4)}, v{AKA} offset:{tile_off+KV_REC}",
                       f"ds_read_b64 {v(KF+4,2)}, v{AKB} offset:{tile_off+KV_REC}"]
        ins[11] = []
        if x == 1:
            ins[11].append("s_waitcnt lgkmcnt(0)")
        ins[11].append(f"v_mfma_f32_32x32x16_bf16 {v(O_[y],16)}, {v(VF,4)}, {v(P_[y],4)}, {v(O_[y],16)}")
        ins[17] = [f"v_mfma_f32_32x32x16_bf16 {v(O_[y],16)}, {v(VF+4,4)}, {v(P_[y]+4,4)}, {v(O_[y],16)}"]
        if x == 0:
            ins[17] += [f"s_mov_b64 exec, s[{sVM}:{sVM+1}]",
                        f"ds_read_b128 {v(VF,4)}, v{AV} offset:{tile_off}",
                        f"ds_read_b128 {v(VF+4,4)}, v{AV} offset:{tile_off+640}",
                        "s_mov_b64 exec, -1"]
        for i, sx in enumerate(seq):
            for e in ins.get(i, []):
                p(e)
            p(sx)

    p(".p2align 6")
    p.label("L2_loop")
    for u in range(UNR):
        block(0, u * KV_REC)
        block(1, u * KV_REC)
    for a in (AKA, AKB, AV):
        p(f"v_add_u32 v{a}, {UNR*KV_REC}, v{a}")
    p(f"s_add_u32 s{sCNT}, s{sCNT}, 1")
    assert UNR == 4
    p(f"s_cmp_eq_u32 s{sCNT}, 1")
    p("s_cbranch_scc1 L2_w1")
    p(f"s_cmp_eq_u32 s{sCNT}, 4")
    p("s_cbranch_scc1 L2_w2")
    p(f"s_cmp_lt_u32 s{sCNT}, {32//UNR}")
    p("s_cbranch_scc1 L2_loop")
    p("s_branch L2_done")
    p.label("L2_w1")
    p("s_waitcnt vmcnt(9)")
    p("s_barrier")
    p("s_branch L2_loop")
    p.label("L2_w2")
    p("s_waitcnt vmcnt(0)")
    p("s_barrier")
    p("s_branch L2_loop")
    p.label("L2_done")
    p(f"v_mfma_f32_32x32x16_bf16 {v(O_[1],16)}, {v(VF,4)}, {v(P_[1],4)}, {v(O_[1],16)}")
    p(f"v_mfma_f32_32x32x16_bf16 {v(O_[1],16)}, {v(VF+4,4)}, {v(P_[1]+4,4)}, {v(O_[1],16)}")
    p("s_waitcnt lgkmcnt(0)")
    p("s_barrier")
    p(f"s_lshl_b32 s36, s{sW}, 12")
    p("v_add_u32 v5, s36, v15")
    p("s_xor_b32 s36, s36, 0x4000")
    p("v_add_u32 v6, s36, v15")
    p(f"s_cmp_ge_u32 s{sW}, 4")
    p("s_cbranch_scc1 L2_hi")
    for i in range(4):
        p(f"ds_write_b128 v5, {v(O_[1]+4*i,4)} offset:{1024*i}")
    p("s_branch L2_x")
    p.label("L2_hi")
    for i in range(4):
        p(f"ds_write_b128 v5, {v(O_[0]+4*i,4)} offset:{1024*i}")
    p("s_nop 1")
    for r in range(16):
        p(f"v_mov_b32 v{O_[0]+r}, v{O_[1]+r}")
    for r in range(8):
        p(f"v_mov_b32 v{QA[0]+r}, v{QA[1]+r}")
    p.label("L2_x")
    p("s_waitcnt lgkmcnt(0)")
    p("s_barrier")
    for i in range(4):
        p(f"ds_read_b128 {v(S_[0]+4*i,4)}, v6 offset:{1024*i}")
    p("s_waitcnt lgkmcnt(0)")
    O = O_[0]
    for r in range(13):
        p(f"v_add_f32 v{O+r}, v{O+r}, v{S_[0]+r}")
    p(f"v_cndmask_b32 v7, v{O+12}, v{O+8}, s[{sHM}:{sHM+1}]")
    p(f"v_mov_b32 v8, {f32(2.0**-64)}")
    p("v_cmp_nge_f32 vcc, v7, v8")
    p("s_cbranch_vccnz L2_slow")
    p.label("L2_fin")
    p("v_rcp_f32 v8, v7")
    for r in range(12):
        p(f"v_mul_f32 v{O+r}, v{O+r}, v8")
    for k in range(6):
        p(f"v_cvt_pk_bf16_f32 v{P_[0]+k}, v{O+2*k}, v{O+2*k+1}")
    p(f"s_and_b32 s36, s{sW}, 3")
    p("s_lshl_b32 s36, s36, 1")
    p(f"s_lshr_b32 s37, s{sW}, 2")
    p("s_add_u32 s36, s36, s37")
    p(f"s_lshl_b32 s37, s{sQB}, 3")
    p("s_add_u32 s36, s36, s37")
    p(f"s_mul_i32 s36, s36, {2*AF_RT}")
    p(f"s_add_u32 s36, s36, {AF_OFF}")
    p(f"s_lshr_b32 s37, s{sHEAD}, 1")
    p("s_mul_i32 s37, s37, 1280")
    p("s_add_u32 s36, s36, s37")
    p(f"s_and_b32 s37, s{sHEAD}, 1")
    p("s_mul_i32 s38, s37, 768")
    p("s_add_u32 s38, s38, s36")
    p("s_lshl_b32 s37, s37, 3")
    p("s_add_u32 s39, s37, s36")
    p(f"v_bfe_u32 v9, v{LANE}, 4, 1")
    p(f"v_mul_u32_u24 v9, {AF_RT}, v9")
    p(f"v_and_b32 v10, 15, v{LANE}")
    p("v_lshl_add_u32 v9, v10, 4, v9")
    p(f"v_lshrrev_b32 v10, 5, v{LANE}")
    p("v_lshl_add_u32 v10, v10, 8, v9")
    p(f"buffer_store_dwordx4 {v(P_[0],4)}, v10, s[24:27], s38 offen")
    p("s_mov_b32 exec_hi, 0")
    p(f"buffer_store_dwordx2 {v(P_[0]+4,2)}, v9, s[24:27], s39 offen offset:512")
    p("s_branch L2_end")
    p.label("L2_slow")
    q = QA[0]
    p(f"v_mov_b32 v{q+6}, 0")
    for r in range(16):
        p(f"v_mov_b32 v{O+r}, 0")
    p("v_mov_b32 v14, 0xff800000")
    p(f"v_and_b32 v5, 31, v{LANE}")
    p(f"v_lshrrev_b32 v6, 5, v{LANE}")
    p("v_lshlrev_b32 v12, 3, v5")
    p("v_add_u32 v12, 1024, v12")
    p("v_mul_u32_u24 v13, 320, v6")
    p("v_lshl_add_u32 v13, v5, 4, v13")
    p("v_add_u32 v13, 1280, v13")
    p(f"s_mul_i32 s43, s{sHEAD}, {KV_HS}")
    p(f"s_mov_b32 s{sCNT}, 0")
    S = S_[0]
    P = P_[0]
    p.label("L2_sloop")
    p(f"buffer_load_dwordx4 {v(KF,4)}, v15, s[12:15], s43 offen")
    p(f"buffer_load_dwordx2 {v(KF+4,2)}, v12, s[12:15], s43 offen")
    p(f"s_mov_b64 exec, s[{sVM}:{sVM+1}]")
    p(f"buffer_load_dwordx4 {v(VF,4)}, v13, s[12:15], s43 offen")
    p(f"buffer_load_dwordx4 {v(VF+4,4)}, v13, s[12:15], s43 offen offset:640")
    p("s_mov_b64 exec, -1")
    p("s_waitcnt vmcnt(0)")
    p(f"v_mfma_f32_32x32x16_bf16 {v(S,16)}, {v(KF,4)}, {v(q,4)}, 0")
    p(f"v_mfma_f32_32x32x16_bf16 {v(S,16)}, {v(KF+4,4)}, {v(q+4,4)}, {v(S,16)}")
    p(f"v_max3_f32 v5, v{S}, v{S+1}, v14")
    for k in range(1, 8):
        p(f"v_max3_f32 v5, v{S+2*k}, v{S+2*k+1}, v5")
    p("v_mov_b32 v6, v5")
    p("v_permlane32_swap_b32 v5, v6")
    p("v_max_f32 v5, v5, v6")
    p("v_sub_f32 v6, v14, v5")
    p("v_exp_f32 v6, v6")
    p("v_mov_b32 v14, v5")
    for r in range(16):
        p(f"v_sub_f32 v{S+r}, v{S+r}, v5")
    for r in range(16):
        p(f"v_exp_f32 v{S+r}, v{S+r}")
    for r in range(16):
        p(f"v_mul_f32 v{O+r}, v{O+r}, v6")
    for k in range(8):
        p(f"v_cvt_pk_bf16_f32 v{P+k}, v{S+2*k}, v{S+2*k+1}")
    p(f"v_mfma_f32_32x32x16_bf16 {v(O,16)}, {v(VF,4)}, {v(P,4)}, {v(O,16)}")
    p(f"v_mfma_f32_32x32x16_bf16 {v(O,16)}, {v(VF+4,4)}, {v(P+4,4)}, {v(O,16)}")
    p(f"s_add_u32 s43, s43, {KV_REC}")
    p(f"s_add_u32 s{sCNT}, s{sCNT}, 1")
    p(f"s_cmp_lt_u32 s{sCNT}, 64")
    p("s_nop 7")
    p("s_cbranch_scc1 L2_sloop")
    p("s_nop 7")
    p(f"v_cndmask_b32 v7, v{O+12}, v{O+8}, s[{sHM}:{sHM+1}]")
    p("s_branch L2_fin")
    p.label("L2_end")
    p("s_endpgm")
    errs = []
    dec = {"L2_w1": [True] + [False] * 10, "L2_w2": [False, False, True] + [False] * 10, "L2_loop": [True] * 5 + [False]}
    errs += p.check_path(dict(dec))
    d2 = dict(dec); d2.update({"L2_hi": [True], "L2_slow": [True], "L2_sloop": [True, True, False]})
    errs += p.check_path(d2)
    return p, errs


def k3():
    p = Prog("gemm3_kernel")
    LANE, VX16, TR = 1, 2, 3
    DOFF = 4
    XV = 10
    VO = 9
    T = 20
    AF = 24
    WF = 56
    ACC = 76
    RD = 156
    sW, sRB, sCB = 3, 28, 29
    sDS, sAS, sCNT, sLB = 30, 31, 32, 33
    sA1, sA2, sA3 = 34, 35, 36
    p("s_cmp_ge_u32 s2, 256")
    p("s_cbranch_scc1 L3_end")
    p("s_load_dwordx2 s[4:5], s[0:1], 0")
    p("s_load_dwordx2 s[6:7], s[0:1], 16")
    p("s_load_dwordx4 s[8:11], s[0:1], 48")
    p("s_load_dwordx2 s[44:45], s[0:1], 72")
    p("v_lshrrev_b32 v20, 6, v0")
    p(f"v_and_b32 v{LANE}, 63, v0")
    p(f"v_readfirstlane_b32 s{sW}, v20")
    p(f"v_lshlrev_b32 v{VX16}, 4, v{LANE}")
    p("s_and_b32 s37, s2, 7")
    p("s_lshl_b32 s37, s37, 2")
    p("s_bfe_u32 s38, s2, 0x20003")
    p(f"s_add_u32 s{sRB}, s37, s38")
    p(f"s_lshr_b32 s{sCB}, s2, 5")
    for i in range(5):
        p(f"v_add_u32 v20, {64*i}, v{LANE}")
        p("v_mul_u32_u24 v21, 6554, v20")
        p("v_lshrrev_b32 v21, 16, v21")
        p("v_mul_u32_u24 v22, 10, v21")
        p("v_sub_u32 v22, v20, v22")
        p("v_mul_u32_u24 v21, 1280, v21")
        p(f"v_lshl_add_u32 v{DOFF+i}, v22, 4, v21")
    p(f"s_mul_i32 s37, s{sW}, 10")
    p(f"s_sub_u32 s38, s{sW}, 2")
    p("s_lshl_b32 s38, s38, 3")
    p(f"s_cmp_lt_u32 s{sW}, 2")
    p("s_cselect_b32 s39, s37, s38")
    p(f"s_cselect_b32 s{sCNT}, 5, 4")
    p("s_cselect_b32 s40, 0, 20")
    p("s_add_u32 s40, s40, s39")
    p(f"s_mul_i32 s{sDS}, s39, {32*1280}")
    p(f"s_mul_i32 s41, s{sCB}, 160")
    p("s_waitcnt lgkmcnt(0)")
    p(f"s_cmp_lt_u32 s{sW}, 2")
    p("s_cselect_b32 s42, s6, s8")
    p("s_cselect_b32 s43, s7, s9")
    csel(p, 14, 640*1280, 1536*1280)
    p("s_add_u32 s12, s42, s41")
    p("s_addc_u32 s13, s43, 0")
    p("s_sub_u32 s14, s14, s41")
    p("s_mov_b32 s15, 0x00020000")
    srd(p, 16, 44, 45, AF_SZ, off=AF_OFF)
    srd(p, 20, 4, 5, 2048 * 1280)
    srd(p, 24, 10, 11, 2048 * 1280)
    p(f"s_mul_i32 s{sAS}, s{sRB}, {4*AF_RT}")
    p("s_lshl_b32 s40, s40, 10")
    p(f"s_add_u32 s{sAS}, s{sAS}, s40")
    p(f"s_mul_i32 s{sLB}, s{sW}, 10240")

    def issue(slot):
        for i in range(5):
            p(f"s_add_u32 m0, s{sLB}, {slot*5120+1024*i}")
            p(f"buffer_load_dwordx4 v{DOFF+i}, s[12:15], s{sDS} offen lds")
        p(f"s_add_u32 s{sDS}, s{sDS}, {32*1280}")

    def issue_a(slot):
        p(f"s_add_u32 s{sA1}, s{sAS}, {AF_RT}")
        p(f"s_add_u32 s{sA2}, s{sAS}, {2*AF_RT}")
        p(f"s_add_u32 s{sA3}, s{sAS}, {3*AF_RT}")
        for i, so in enumerate((sAS, sA1, sA2, sA3)):
            p(f"buffer_load_dwordx4 {v(AF+16*slot+4*i,4)}, v{VX16}, s[16:19], s{so} offen")
        p(f"s_add_u32 s{sAS}, s{sAS}, 1024")

    issue(0); issue_a(0); issue(1); issue_a(1)
    p(f"v_lshrrev_b32 v20, 4, v{LANE}")
    p(f"v_bfe_u32 v21, v{LANE}, 2, 2")
    p("v_lshl_add_u32 v21, v20, 3, v21")
    p("v_mul_u32_u24 v21, 160, v21")
    p(f"v_and_b32 v22, 3, v{LANE}")
    p("v_mul_u32_u24 v22, 40, v22")
    p("v_add_u32 v21, v21, v22")
    p(f"v_add_u32 v{TR}, s{sLB}, v21")
    p(f"s_and_b32 s37, s{sW}, 3")
    p("s_lshl_b32 s37, s37, 4")
    p(f"s_lshl_b32 s38, s{sRB}, 6")
    p("s_add_u32 s37, s37, s38")
    p(f"v_and_b32 v21, 15, v{LANE}")
    p("v_add_u32 v21, s37, v21")
    p("v_mul_u32_u24 v21, 1280, v21")
    p("v_mul_u32_u24 v20, 40, v20")
    p("v_add_u32 v21, v21, v20")
    p(f"v_add_u32 v{VO}, s41, v21")
    for r in range(80):
        p(f"v_mov_b32 v{ACC+r}, 0")
    p.label("L3_loop")
    p(f"s_cmp_eq_u32 s{sCNT}, 1")
    p(f"s_cselect_b32 s{sDS}, 0x40000000, s{sDS}")
    p(f"s_cselect_b32 s{sAS}, 0x40000000, s{sAS}")
    for slot in range(2):
        p("s_waitcnt vmcnt(9)")
        for j in range(5):
            p(f"ds_read_b64_tr_b16 {v(WF+4*j,2)}, v{TR} offset:{slot*5120+8*j}")
            p(f"ds_read_b64_tr_b16 {v(WF+4*j+2,2)}, v{TR} offset:{slot*5120+8*j+640}")
        p("s_waitcnt lgkmcnt(0)")
        issue(slot)
        for i in range(4):
            for j in range(5):
                a = v(ACC + 4 * (5 * i + j), 4)
                p(f"v_mfma_f32_16x16x32_bf16 {a}, {v(WF+4*j,4)}, {v(AF+16*slot+4*i,4)}, {a}")
        issue_a(slot)
    p(f"s_sub_u32 s{sCNT}, s{sCNT}, 1")
    p(f"s_cmp_lg_u32 s{sCNT}, 0")
    p("s_cbranch_scc1 L3_loop")
    p("s_waitcnt vmcnt(0)")
    for k in range(5):
        p(f"buffer_load_dwordx2 {v(XV+2*k,2)}, v{VO}, s[20:23], 0 offen offset:{8*k}")
    p("s_barrier")
    p(f"s_mul_i32 s37, s{sW}, 20480")
    p(f"v_add_u32 v20, s37, v{VX16}")
    for q in range(20):
        p(f"ds_write_b128 v20, {v(ACC+4*q,4)} offset:{1024*q}")
    p("s_waitcnt lgkmcnt(0)")
    p("s_barrier")
    p(f"s_cmp_ge_u32 s{sW}, 4")
    p("s_cbranch_scc1 L3_end")
    p(f"s_mul_i32 s37, s{sW}, 5120")
    p(f"v_add_u32 v20, s37, v{VX16}")
    p("v_add_u32 v21, 61440, v20")
    p("v_add_u32 v22, 122880, v20")
    def rd(w, dst):
        base, o = (("v20", w) if w < 3 else ("v21", w - 3) if w < 6 else ("v22", w - 6))
        for j in range(5):
            p(f"ds_read_b128 {v(dst+4*j,4)}, {base} offset:{20480*o+1024*j}")
    rd(0, ACC)
    rd(1, ACC + 20)
    rd(2, ACC + 40)
    for w in range(1, 8):
        src = ACC + 20 * (w % 3) if w % 3 else ACC + 60
        left = min(7 - w, 1) * 5
        p(f"s_waitcnt lgkmcnt({left})")
        for r in range(20):
            p(f"v_add_f32 v{ACC+r}, v{ACC+r}, v{src+r}")
        nw = w + 2
        if nw < 8:
            rd(nw, ACC + 20 * (nw % 3) if nw % 3 else ACC + 60)
    p("s_waitcnt vmcnt(0)")
    p("s_mov_b32 s37, 0xffff0000")
    for k in range(10):
        p(f"v_lshlrev_b32 v20, 16, v{XV+k}")
        p(f"v_and_b32 v21, s37, v{XV+k}")
        p(f"v_add_f32 v20, v20, v{ACC+2*k}")
        p(f"v_add_f32 v21, v21, v{ACC+2*k+1}")
        p(f"v_cvt_pk_bf16_f32 v{XV+k}, v20, v21")
    for k in range(5):
        p(f"buffer_store_dwordx2 {v(XV+2*k,2)}, v{VO}, s[24:27], 0 offen offset:{8*k}")
    p.label("L3_end")
    p("s_endpgm")
    errs = p.check_path({"L3_loop": [True, True, True, False]})
    return p, errs


def main():
    hdr = open(f"cdna_kernels/{NAME}.s.ref").read().split("\n")
    head = [l for l in hdr if l.startswith(";") and "@launch" not in l and "Override" not in l and "grid=ceil" not in l]
    ks = [(k0(), 256, 128, 0), (k1(), 256, 512, 3 * SLOT), (k2(), 256, 512, 163840), (k3(), 256, 512, 163840)]
    out = "\n".join(head) + "\n"
    for (p, e), g, b, l in ks:
        out += f"; @launch kernel={p.name} grid=({g},1,1) block=({b},1,1) lds={l}\n"
    out += '.amdgcn_target "amdgcn-amd-amdhsa--gfx950"\n'
    bad = False
    for (p, e), g, b, l in ks:
        for x in e:
            print(p.name, "ERR:", x)
            bad = True
        print(p.name, "vgpr", p.maxv, "sgpr", p.maxs, "instrs", len(p.ins))
        out += kernel_text(p)
    dst = sys.argv[1] if len(sys.argv) > 1 else f"cdna_kernels/{NAME}.s"
    open(dst, "w").write(out)
    if bad:
        sys.exit(1)


if __name__ == "__main__":
    main()
```
